```python
import torch

def _softmax(x, axis=-1):
    return torch.softmax(x, dim=axis)
def _gelu(x):
    return torch.nn.functional.gelu(x, approximate="tanh")
def _silu(x):
    return torch.nn.functional.silu(x)
def _sigmoid(x):
    return torch.sigmoid(x)
def _layernorm(x, axis=-1, eps=1e-5):
    m = x.mean(dim=axis, keepdim=True)
    v = x.var(dim=axis, keepdim=True, unbiased=False)
    return (x - m) / torch.sqrt(v + eps)
def _scatter_add(tgt, idx, src, axis=0):
    return tgt.clone().index_add_(axis, idx, src)
def _segment_sum(src, seg, n):
    out = torch.zeros((n,) + src.shape[1:], dtype=src.dtype)
    return out.index_add_(0, seg, src)
def _pad(x, pw):
    flat = tuple(v for pair in reversed(pw) for v in pair)
    return torch.nn.functional.pad(x, flat)

kernel_name = 'parallel_sum__ssm_conv_s4__swiglu_ffn__prompt'

def setup_inputs():

    _w = (lambda a: (lambda t: t.to(torch.bfloat16) if t.is_floating_point() else t)(torch.as_tensor(a)))
    def _A_setup():
        B, L, D, N = 1, 2048, 512, 128
        A_re = -(lambda _x: torch.exp(torch.as_tensor(_x)))((lambda *s: torch.randn(*s, dtype=torch.bfloat16) * 3.2)(D, N))
        A_im = torch.pi * (lambda *s: torch.randn(*s, dtype=torch.bfloat16) * 0.1)(D, N)
        B_re = (lambda *s: torch.randn(*s, dtype=torch.bfloat16) * 0.4)(D, N)
        B_im = (lambda *s: torch.randn(*s, dtype=torch.bfloat16) * 0.4)(D, N)
        C_re = (lambda *s: torch.randn(*s, dtype=torch.bfloat16) * 0.4)(D, N)
        C_im = (lambda *s: torch.randn(*s, dtype=torch.bfloat16) * 0.4)(D, N)
        log_dt = (lambda *s: torch.randn(*s, dtype=torch.bfloat16) * 0.1)(D) * 0.5 - 4.0
        Dskip = (lambda *s: torch.randn(*s, dtype=torch.bfloat16) * 0.2)(D)
        return {
            "u": _w((lambda *s: torch.randn(*s, dtype=torch.bfloat16) * 0.05)(B, L, D)),
            "A_re": _w(A_re),
            "A_im": _w(A_im),
            "B_re": _w(B_re),
            "B_im": _w(B_im),
            "C_re": _w(C_re),
            "C_im": _w(C_im),
            "log_dt": _w(log_dt),
            "Dskip": _w(Dskip),
        }
    _A_in = _A_setup()

    def _B_setup():
        B, S, D, F = 1, 2048, 512, 1376
        return {
            "x": _w((lambda *s: torch.randn(*s, dtype=torch.bfloat16) * 0.05)(B, S, D)),
            "w_gate": _w((lambda *s: torch.randn(*s, dtype=torch.bfloat16) * 0.05)(D, F)),
            "w_up": _w((lambda *s: torch.randn(*s, dtype=torch.bfloat16) * 0.05)(D, F)),
            "w_down": _w((lambda *s: torch.randn(*s, dtype=torch.bfloat16) * 0.05)(F, D)),
        }
    _B_in = _B_setup()

    return {
        "A_u": _A_in["u"],
        "A_A_re": _A_in["A_re"],
        "A_A_im": _A_in["A_im"],
        "A_B_re": _A_in["B_re"],
        "A_B_im": _A_in["B_im"],
        "A_C_re": _A_in["C_re"],
        "A_C_im": _A_in["C_im"],
        "A_log_dt": _A_in["log_dt"],
        "A_Dskip": _A_in["Dskip"],
        "B_x": _B_in["x"],
        "B_w_gate": _B_in["w_gate"],
        "B_w_up": _B_in["w_up"],
        "B_w_down": _B_in["w_down"],
    }

def reference(A_u, A_A_re, A_A_im, A_B_re, A_B_im, A_C_re, A_C_im, A_log_dt, A_Dskip, B_x, B_w_gate, B_w_up, B_w_down):
    def _A_ref(u, A_re, A_im, B_re, B_im, C_re, C_im, log_dt, Dskip):
        Bsz, L, D = u.shape
        dt = torch.exp(log_dt)[:, None]
        A = A_re + 1j * A_im
        Bc = B_re + 1j * B_im
        Cc = C_re + 1j * C_im
        logdA = dt * A
        dB = dt * Bc
        l = (lambda x, dt: x.to(dt))(torch.arange(L), A_re.dtype)
        P = torch.exp(logdA[:, :, None] * l[None, None, :])
        K = torch.einsum("dn,dnl,dn->dl", Cc, P, dB).real
        L2 = 2 * L
        Kp = _pad(K, ((0, 0), (0, L)))
        up = (lambda x, *d: x.permute(*d))(u, 0, 2, 1)
        up = _pad(up, ((0, 0), (0, 0), (0, L)))
        Kf = (lambda x, axes=(-2,-1): torch.fft.rfft2(x.float(), dim=axes))(Kp[:, None, :], axes=(-2, -1))
        Uf = (lambda x, axes=(-2,-1): torch.fft.rfft2(x.float(), dim=axes))(up[:, :, None, :], axes=(-2, -1))
        Yf = Uf * Kf[None, :, :, :]
        y = (lambda x, s, axes=(-2,-1): torch.fft.irfft2(x, s=s, dim=axes).to(torch.bfloat16))(Yf, (1, L2), axes=(-2, -1))[:, :, 0, :L]
        y = (lambda x, *d: x.permute(*d))(y, 0, 2, 1) + u * Dskip[None, None, :]
        return y

    def _B_ref(x, w_gate, w_up, w_down):
        g = _silu(x @ w_gate)
        u = x @ w_up
        return (g * u) @ w_down

    x = A_u
    xn = _layernorm(x, axis=-1)
    return x + _A_ref(xn, A_A_re, A_A_im, A_B_re, A_B_im, A_C_re, A_C_im, A_log_dt, A_Dskip) + _B_ref(xn, B_w_gate, B_w_up, B_w_down)
```

```python
HF_OFF   = 0x0000000
WDF_OFF  = 0x0600000
XT_OFF   = 0x0800000
KP_OFF   = 0x0B00000
YA_OFF   = 0x1000000
FLAG_OFF = 0x1300000
WS_BYTES = 0x10000000
NU = 86

class Asm:
    def __init__(self):
        self.lines = []
        self.uid = 0
    def __call__(self, s):
        for l in s.strip("\n").split("\n"):
            self.lines.append("    " + l.strip())
    def label(self, l):
        self.lines.append(l + ":")
    def raw(self, s):
        self.lines.append(s)
    def newlabel(self, p="L"):
        self.uid += 1
        return f"{p}_{self.uid}"
    def text(self):
        return "\n".join(self.lines) + "\n"

def vr(b, n=1):
    return f"v{b}" if n == 1 else f"v[{b}:{b+n-1}]"
def sr(b, n=1):
    return f"s{b}" if n == 1 else f"s[{b}:{b+n-1}]"

def kernel_begin(A, name):
    A.raw(f".globl {name}")
    A.raw(".p2align 8")
    A.raw(f".type {name},@function")
    A.label(name)

def kernel_desc(A, name, vgpr, sgpr, accum):
    A.raw(".p2align 6")
    A.raw(f".amdhsa_kernel {name}")
    A.raw(f"  .amdhsa_next_free_vgpr {vgpr}")
    A.raw(f"  .amdhsa_next_free_sgpr {sgpr}")
    A.raw(f"  .amdhsa_accum_offset {accum}")
    A.raw("  .amdhsa_group_segment_fixed_size 0")
    A.raw("  .amdhsa_kernarg_size 128")
    A.raw("  .amdhsa_user_sgpr_count 2")
    A.raw("  .amdhsa_user_sgpr_kernarg_segment_ptr 1")
    A.raw("  .amdhsa_system_sgpr_workgroup_id_x 1")
    A.raw(".end_amdhsa_kernel")

P_X, P_ARE, P_AIM, P_BRE, P_BIM, P_CRE, P_CIM, P_LDT = 16, 18, 20, 22, 24, 26, 28, 30
P_DSK, P_BX, P_WG, P_WU, P_WD, P_OUT, P_DBG, P_WS = 32, 34, 36, 38, 40, 42, 44, 46

def srd(A, d, ptr, nbytes):
    A(f"s_mov_b32 s{d}, s{ptr}")
    A(f"s_and_b32 s{d+1}, s{ptr+1}, 0xffff")
    A(f"s_mov_b32 s{d+2}, {hex(nbytes)}")
    A(f"s_mov_b32 s{d+3}, 0x20000")
```

```python
from common import *

WSLOT = 24640; UPOFF = 12320
TB = 4 * WSLOT
TROW = 544
TSZ = 57 * TROW
XB = TB
WDS = TB + 2 * TSZ
K1_LDS = 163840

S_RB, S_CG, S_U0, S_CGX, S_KSTAR, S_W = 48, 49, 50, 51, 52, 53
SRD_X, SRD_W, SRD_WS, SRD_WD = 56, 60, 64, 84
S_KC = 70
S_E0, S_E1, S_ONES = 78, 79, 80

def cmul(A, d, a, b):
    A(f"v_pk_mul_f32 {vr(d,2)}, {vr(a,2)}, {vr(b,2)} op_sel:[0,0] op_sel_hi:[1,0]")
    A(f"v_pk_fma_f32 {vr(d,2)}, {vr(a,2)}, {vr(b,2)}, {vr(d,2)} op_sel:[1,1,0] op_sel_hi:[0,1,1] neg_lo:[1,0,0]")

def rne_f32(A, d, s):
    A(f"v_cvt_pk_bf16_f32 v{d}, v{s}, v{s}")
    A(f"v_lshlrev_b32 v{d}, 16, v{d}")

def gen_k1(A):
    kernel_begin(A, "k1_kernel")
    A("s_cmp_ge_u32 s2, 256")
    A("s_cbranch_scc1 K1_END")
    A("s_load_dwordx16 s[16:31], s[0:1], 0")
    A("s_load_dwordx16 s[32:47], s[0:1], 64")
    A("v_lshrrev_b32 v1, 6, v0")
    A("v_and_b32 v0, 63, v0")
    A(f"v_readfirstlane_b32 s{S_W}, v1")
    A(f"""
    s_and_b32 s54, s2, 7
    s_lshr_b32 s55, s2, 3
    s_and_b32 s{S_RB}, s54, 1
    s_lshl_b32 s{S_RB}, s{S_RB}, 3
    s_and_b32 s68, s55, 7
    s_add_u32 s{S_RB}, s{S_RB}, s68
    s_lshr_b32 s{S_CG}, s54, 1
    s_lshl_b32 s{S_CG}, s{S_CG}, 2
    s_lshr_b32 s69, s55, 3
    s_add_u32 s{S_CG}, s{S_CG}, s69
    s_mul_i32 s{S_U0}, s{S_CG}, 6
    s_min_u32 s{S_U0}, s{S_U0}, 80
    s_lshl_b32 s68, s68, 1
    s_add_u32 s{S_CGX}, s{S_CG}, s68
    s_and_b32 s{S_CGX}, s{S_CGX}, 15
    s_lshr_b32 s{S_KSTAR}, s{S_CGX}, 1
    s_mov_b32 s{S_E0}, 0x00003f80
    s_mov_b32 s{S_E1}, 0x3f800000
    s_mov_b32 s{S_ONES}, 0x3f803f80
    """)
    for i in range(8):
        A(f"s_add_u32 s{S_KC+i}, s{S_KSTAR}, {i+1}")
        A(f"s_and_b32 s{S_KC+i}, s{S_KC+i}, 7")
        A(f"s_lshl_b32 s{S_KC+i}, s{S_KC+i}, 7")
    A("s_waitcnt lgkmcnt(0)")
    srd(A, SRD_WS, P_WS, WS_BYTES)
    A(f"s_cmp_ge_u32 s{S_W}, 4")
    A("s_cbranch_scc1 K1_CONS")
    gen_producer(A)
    A.label("K1_CONS")
    gen_consumer(A)
    A.label("K1_END")
    A("s_endpgm")

XR = lambda rg, i: 128 + 16 * i + 4 * rg

def dma_chunk(A, i):
    A(f"s_mul_i32 s82, s{S_KC+i}, 1376")
    A(f"s_add_u32 m0, s81, {(i & 3) * WSLOT}")
    A("s_mov_b64 exec, s[68:69]")
    for t in range(8):
        A(f"buffer_load_dwordx4 v14, {sr(SRD_W,4)}, s82 offen lds")
        if t < 7:
            A("s_add_u32 m0, m0, 768")
            A("s_add_u32 s82, s82, 11008")
    A("s_mov_b64 exec, -1")

def normalize(A, i, buf):
    for rg in range(4):
        T = 16 + 16 * (rg & 1)
        P = T + 8
        O = T + 12
        X = XR(rg, i)
        for k in range(4):
            A(f"v_dot2_f32_bf16 v{T+2*k}, v{X+k}, s{S_E0}, v{6+rg}")
            A(f"v_dot2_f32_bf16 v{T+2*k+1}, v{X+k}, s{S_E1}, v{6+rg}")
        A("s_nop 0")
        for k in range(4):
            A(f"v_cvt_pk_bf16_f32 v{P+k}, v{T+2*k}, v{T+2*k+1}")
        for k in range(4):
            A(f"v_lshlrev_b32 v{T+2*k}, 16, v{P+k}")
            A(f"v_and_b32 v{T+2*k+1}, 0xffff0000, v{P+k}")
        for k in range(8):
            A(f"v_mul_f32 v{T+k}, v{T+k}, v{10+rg}")
        for k in range(4):
            A(f"v_cvt_pk_bf16_f32 v{O+k}, v{T+2*k}, v{T+2*k+1}")
        A(f"ds_write_b128 v{48 + (rg & 1)}, {vr(O,4)} offset:{buf*16384 + rg*1024}")

def gen_producer(A):
    srd(A, SRD_X, P_X, 2048 * 512 * 2)
    A(f"s_cmp_ge_u32 s{S_W}, 2")
    A(f"s_cselect_b32 s{SRD_W}, s{P_WU}, s{P_WG}")
    A(f"s_cselect_b32 s{SRD_W+1}, s{P_WU+1}, s{P_WG+1}")
    A(f"s_and_b32 s{SRD_W+1}, s{SRD_W+1}, 0xffff")
    A(f"s_mov_b32 s{SRD_W+2}, {512*1376*2}")
    A(f"s_mov_b32 s{SRD_W+3}, 0x20000")
    A(f"""
    v_lshrrev_b32 v6, 3, v0
    v_and_b32 v7, 7, v0
    s_lshl_b32 s68, s{S_RB}, 17
    s_lshl_b32 s69, s{S_W}, 15
    s_add_u32 s68, s68, s69
    v_lshlrev_b32 v2, 10, v6
    v_lshl_add_u32 v2, v7, 4, v2
    v_add_u32 v2, s68, v2
    v_add_u32 v3, 8192, v2
    v_add_u32 v4, 16384, v2
    v_add_u32 v5, 24576, v2
    """)
    for i in range(8):
        for rg in range(4):
            A(f"buffer_load_dwordx4 {vr(XR(rg,i),4)}, v{2+rg}, {sr(SRD_X,4)}, s{S_KC+i} offen")
    A(f"""
    v_mul_u32_u24 v8, 43, v0
    v_lshrrev_b32 v8, 9, v8
    v_mul_u32_u24 v9, 12, v8
    v_sub_u32 v9, v0, v9
    v_mul_u32_u24 v14, 2752, v8
    v_lshl_add_u32 v14, v9, 4, v14
    s_and_b32 s68, s{S_W}, 1
    s_mul_i32 s69, s68, {32*2752}
    s_lshl_b32 s81, s{S_U0}, 5
    s_add_u32 s69, s69, s81
    v_add_u32 v14, s69, v14
    s_mul_i32 s81, s68, {32*192}
    s_lshr_b32 s68, s{S_W}, 1
    s_mul_i32 s68, s68, {UPOFF}
    s_add_u32 s81, s81, s68
    s_mov_b32 s68, -1
    s_mov_b32 s69, 0xffff
    """)
    for i in range(4):
        dma_chunk(A, i)
    A(f"""
    v_lshrrev_b32 v8, 1, v6
    v_xor_b32 v8, v7, v8
    v_lshlrev_b32 v8, 4, v8
    v_lshl_add_u32 v48, v6, 7, v8
    s_lshl_b32 s82, s{S_W}, 12
    s_add_u32 s82, s82, {XB}
    v_add_u32 v48, s82, v48
    v_xor_b32 v49, 64, v48
    """)
    for r in range(6, 14):
        A(f"v_mov_b32 v{r}, 0")
    A("s_barrier")
    for i in range(8):
        A(f"s_waitcnt vmcnt({64 - 4*(i+1)})")
        for k in range(4):
            for rg in range(4):
                X = XR(rg, i) + k
                A(f"v_dot2c_f32_bf16 v{6+rg}, s{S_ONES}, v{X}")
                A(f"v_dot2c_f32_bf16 v{10+rg}, v{X}, v{X}")
    A("s_nop 2")
    for ctl in ("quad_perm:[1,0,3,2]", "quad_perm:[2,3,0,1]", "row_half_mirror"):
        for r in range(6, 14):
            A(f"v_add_f32_dpp v{r}, v{r}, v{r} {ctl} row_mask:0xf bank_mask:0xf")
    A("s_mov_b32 s82, 0x3b000000")
    A("s_mov_b32 s83, 0x3727c5ac")
    for rg in range(4):
        A(f"v_mul_f32 v{6+rg}, s82, v{6+rg}")
        A(f"v_mul_f32 v{10+rg}, s82, v{10+rg}")
    for rg in range(4):
        A(f"v_fma_f32 v{10+rg}, -v{6+rg}, v{6+rg}, v{10+rg}")
    for rg in range(4):
        A(f"v_max_f32 v{10+rg}, 0, v{10+rg}")
    for rg in range(4):
        rne_f32(A, 6+rg, 6+rg)
        rne_f32(A, 10+rg, 10+rg)
    for rg in range(4):
        A(f"v_xor_b32 v{6+rg}, 0x80000000, v{6+rg}")
        A(f"v_add_f32 v{10+rg}, s83, v{10+rg}")
    for rg in range(4):
        rne_f32(A, 10+rg, 10+rg)
    for rg in range(4):
        A(f"v_sqrt_f32 v{10+rg}, v{10+rg}")
    A("s_nop 0")
    for rg in range(4):
        rne_f32(A, 10+rg, 10+rg)
    for rg in range(4):
        A(f"v_rcp_f32 v{16+rg}, v{10+rg}")
    A("s_nop 0")
    for rg in range(4):
        A(f"v_fma_f32 v{20+rg}, -v{10+rg}, v{16+rg}, 1.0")
    for rg in range(4):
        A(f"v_fma_f32 v{10+rg}, v{16+rg}, v{20+rg}, v{16+rg}")
    A("s_barrier")
    normalize(A, 0, 0)
    A("s_waitcnt vmcnt(24) lgkmcnt(0)")
    A("s_barrier")
    for i in range(7):
        if 1 <= i <= 4:
            dma_chunk(A, i + 3)
        normalize(A, i + 1, (i + 1) & 1)
        n = 16 if i <= 4 else (8 if i == 5 else 0)
        A(f"s_waitcnt vmcnt({n}) lgkmcnt(0)")
        A("s_barrier")
    A(f"""
    v_and_b32 v2, 15, v0
    v_lshrrev_b32 v3, 4, v0
    v_lshrrev_b32 v4, 2, v2
    v_lshl_add_u32 v4, v3, 3, v4
    v_lshrrev_b32 v5, 1, v4
    v_and_b32 v5, 7, v5                   ; swz(row)
    v_bfe_u32 v6, v2, 1, 1
    s_and_b32 s68, s{S_CGX}, 1
    s_lshl_b32 s68, s68, 2
    v_add_u32 v6, s68, v6
    v_xor_b32 v7, v6, v5
    v_lshlrev_b32 v7, 4, v7
    v_lshl_add_u32 v7, v4, 7, v7
    v_and_b32 v8, 1, v2
    v_lshl_add_u32 v7, v8, 3, v7
    s_lshl_b32 s82, s{S_W}, 12
    s_add_u32 s82, s82, {XB + 16384}
    v_add_u32 v7, s82, v7
    v_xor_b32 v8, 32, v7
    """)
    A(f"""
    ds_read_b64_tr_b16 v[16:17], v7
    ds_read_b64_tr_b16 v[18:19], v8 offset:512
    ds_read_b64_tr_b16 v[20:21], v8
    ds_read_b64_tr_b16 v[22:23], v7 offset:512
    s_lshl_b32 s68, s{S_CGX}, 17          ; cgx*32*4096
    s_lshl_b32 s69, s{S_RB}, 8            ; rb*128*2
    s_add_u32 s68, s68, s69
    s_lshl_b32 s69, s{S_W}, 6
    s_add_u32 s68, s68, s69
    s_add_u32 s68, s68, {XT_OFF}
    v_lshlrev_b32 v9, 12, v2
    v_lshl_add_u32 v9, v3, 4, v9
    s_add_u32 s69, s68, 65536
    s_waitcnt lgkmcnt(0)
    buffer_store_dwordx4 v[16:19], v9, {sr(SRD_WS,4)}, s68 offen
    buffer_store_dwordx4 v[20:23], v9, {sr(SRD_WS,4)}, s69 offen
    s_waitcnt vmcnt(0)
    s_endpgm
    """)

def gen_consumer(A):
    S_WP, S_CH, S_NH, S_CHAN = 54, 55, 56, 57
    A(f"""
    s_sub_u32 s{S_WP}, s{S_W}, 4
    s_lshr_b32 s{S_CH}, s{S_WP}, 1
    s_and_b32 s{S_NH}, s{S_WP}, 1
    s_lshl_b32 s{S_CHAN}, s2, 1
    s_add_u32 s{S_CHAN}, s{S_CHAN}, s{S_CH}
    s_lshl_b32 s68, s{S_CHAN}, 8
    s_lshl_b32 s69, s{S_NH}, 7
    s_add_u32 s68, s68, s69
    v_lshlrev_b32 v2, 1, v0
    v_add_u32 v2, s68, v2
    s_lshl_b32 s69, s{S_CHAN}, 1
    v_mov_b32 v3, s69
    global_load_ushort v38, v3, {sr(P_LDT,2)}
    global_load_ushort v32, v2, {sr(P_ARE,2)}
    global_load_ushort v33, v2, {sr(P_AIM,2)}
    global_load_ushort v34, v2, {sr(P_BRE,2)}
    global_load_ushort v35, v2, {sr(P_BIM,2)}
    global_load_ushort v36, v2, {sr(P_CRE,2)}
    global_load_ushort v37, v2, {sr(P_CIM,2)}
    """)
    srd(A, SRD_WD, P_WD, 1376 * 512 * 2)
    A(f"""
    v_lshrrev_b32 v4, 3, v0
    v_and_b32 v5, 7, v0
    v_lshlrev_b32 v4, 10, v4
    v_lshl_add_u32 v4, v5, 4, v4
    s_lshr_b32 s58, s{S_CHAN}, 3
    s_and_b32 s59, s{S_CHAN}, 7            ; cp
    s_lshl_b32 s60, s58, 14
    s_lshl_b32 s61, s59, 7
    s_add_u32 s60, s60, s61
    s_add_u32 s61, s60, 8192
    s_add_u32 s62, s60, {64*16384}
    s_add_u32 s63, s62, 8192
    s_cmp_eq_u32 s{S_NH}, 0
    s_cbranch_scc1 K1_NOWD
    buffer_load_dwordx4 v[240:243], v4, {sr(SRD_WD,4)}, s60 offen
    buffer_load_dwordx4 v[244:247], v4, {sr(SRD_WD,4)}, s61 offen
    buffer_load_dwordx4 v[248:251], v4, {sr(SRD_WD,4)}, s62 offen
    buffer_load_dwordx4 v[252:255], v4, {sr(SRD_WD,4)}, s63 offen
    s_waitcnt vmcnt(4)
    s_branch K1_PARAMS
    """)
    A.label("K1_NOWD")
    A(f"""
    s_or_b32 s68, s2, s{S_WP}
    s_cmp_lg_u32 s68, 0
    s_cbranch_scc1 K1_NOFLAG
    v_mov_b32 v8, 0
    v_mov_b32 v9, 0
    v_mov_b32 v10, 0
    v_mov_b32 v11, 0
    v_lshlrev_b32 v12, 4, v0
    s_mov_b32 s68, {FLAG_OFF}
    buffer_store_dwordx4 v[8:11], v12, {sr(SRD_WS,4)}, s68 offen
    """)
    A.label("K1_NOFLAG")
    A("s_waitcnt vmcnt(0)")
    A.label("K1_PARAMS")
    for r in range(32, 39):
        A(f"v_lshlrev_b32 v{r}, 16, v{r}")
    A(f"""
    s_mov_b32 s68, 0x3fb8aa3b
    s_mov_b32 s69, 0x32a57060
    v_mul_f32 v39, s68, v38
    v_fma_f32 v40, v38, s68, -v39
    v_fma_f32 v40, v38, s69, v40
    v_exp_f32 v39, v39
    v_mul_f32 v40, 0x3f317218, v40         ; * ln2
    s_nop 0
    v_fma_f32 v39, v39, v40, v39
    """)
    rne_f32(A, 39, 39)
    A(f"""
    v_mul_f32 v32, v39, v32
    v_mul_f32 v33, v39, v33
    v_mul_f32 v34, v39, v34
    v_mul_f32 v35, v39, v35
    v_mul_f32 v32, s68, v32                ; a
    v_mul_f32 v33, 0.15915494, v33
    """)
    G0, G1, L0, L1, W8, W128 = 50, 52, 54, 56, 46, 48
    PW = lambda e: 70 + 2 * (e - 1)
    cmul(A, G0, 36, 34)
    def cexp(d, c, t):
        if c != 1:
            A(f"v_mul_f32 v{t}, {float(c)}, v32" if c in (2, 4) else f"v_mul_f32 v{t}, {hex(fbits(c))}, v32")
            A(f"v_mul_f32 v{t+1}, {hex(fbits(c))}, v33")
            A(f"v_exp_f32 v{t}, v{t}")
            A(f"v_fract_f32 v{t+1}, v{t+1}")
        else:
            A(f"v_exp_f32 v{t}, v32")
            A(f"v_fract_f32 v{t+1}, v33")
        A(f"v_cos_f32 v{d}, v{t+1}")
        A(f"v_sin_f32 v{d+1}, v{t+1}")
        A("s_nop 0")
        A(f"v_mul_f32 v{d}, v{t}, v{d}")
        A(f"v_mul_f32 v{d+1}, v{t}, v{d+1}")
    cexp(PW(1), 1, 58)
    cexp(W8, 8, 60)
    cexp(W128, 128, 58)
    cmul(A, PW(2), PW(1), PW(1))
    cmul(A, PW(3), PW(2), PW(1))
    cmul(A, PW(4), PW(2), PW(2))
    cmul(A, PW(5), PW(4), PW(1))
    cmul(A, PW(6), PW(3), PW(3))
    cmul(A, PW(7), PW(4), PW(3))
    A(f"""
    s_mul_i32 s68, s{S_CH}, {TSZ}
    s_lshl_b32 s69, s{S_NH}, 8
    s_add_u32 s68, s68, s69
    s_add_u32 s68, s68, {TB}
    v_lshlrev_b32 v5, 2, v0
    v_add_u32 v5, s68, v5
    """)
    rot = [0]
    def emit(src, row, neg=False):
        o = 62 + (rot[0] % 8); rot[0] += 1
        A(f"v_cvt_pk_bf16_f32 v{o}, v{src}, {'-' if neg else ''}v{src+1}")
        A(f"ds_write_b32 v5, v{o} offset:{row*TROW}")
    def rows_for(i):
        if i < 2: return [(e, 8*i + e) for e in range(8)]
        if i < 4: return [(4*b + 2*r, 16 + 4*(2*(i-2) + b) + r) for b in range(2) for r in range(2)]
        if i < 8: return [(0, 16 + 4*(i-4) + 2), (4, 16 + 4*(i-4) + 3)]
        if i < 12: return [(0, 32 + 2*(i-8))]
        if i < 16: return [(0, 32 + 2*(i-12) + 1)]
        return [(0, 40)]
    A("v_mov_b32 v61, 0x3f80")
    A(f"ds_write_b32 v5, v61 offset:{41*TROW}")
    emit(W8, 42, neg=True)
    Gc, Gn = G0, G1
    Lc, Ln = W8, L0
    tmp = [84, 86, 88, 90]
    ti = 0
    for i in range(17):
        if i < 16:
            cmul(A, Gn, Gc, W128)
        if i < 14:
            cmul(A, Ln, Lc, W8)
        for e, row in rows_for(i):
            if e == 0:
                emit(Gc, row)
            else:
                t = tmp[ti % 4]; ti += 1
                cmul(A, t, Gc, PW(e))
                emit(t, row)
        if i < 14:
            emit(Ln, 43 + i, neg=True)
            Lc, Ln = Ln, (L1 if Ln == L0 else L0)
        Gc, Gn = Gn, Gc
    A("s_waitcnt lgkmcnt(0)")
    A("s_barrier")
    A(f"s_cmp_eq_u32 s{S_NH}, 0")
    A("s_cbranch_scc0 K1_WDJOB")
    A(f"""
    v_and_b32 v2, 15, v0                  ; m / j
    v_lshrrev_b32 v3, 4, v0               ; g
    s_mul_i32 s68, s{S_CH}, {TSZ}
    s_add_u32 s68, s68, {TB}
    v_mul_u32_u24 v6, {TROW}, v2
    v_lshl_add_u32 v6, v3, 4, v6
    v_add_u32 v6, s68, v6                 ; rows m
    v_lshrrev_b32 v7, 2, v2
    v_lshlrev_b32 v7, 1, v7
    v_and_b32 v8, 1, v2
    v_add3_u32 v7, v7, v8, 32
    v_cmp_eq_u32 vcc, 2, v2
    v_mov_b32 v8, 40
    s_nop 0
    v_cndmask_b32 v7, v7, v8, vcc
    v_mul_u32_u24 v7, {TROW}, v7
    v_lshl_add_u32 v7, v3, 4, v7
    v_add_u32 v7, s68, v7
    """)
    for s in range(8):
        A(f"ds_read_b128 {vr(32+4*s,4)}, v6 offset:{41*TROW + 64*s}")
    AF = 128
    for t in range(3):
        for s in range(8):
            r = AF + 4 * (8*t + s)
            if t < 2:
                A(f"ds_read_b128 {vr(r,4)}, v6 offset:{16*t*TROW + 64*s}")
            else:
                A(f"ds_read_b128 {vr(r,4)}, v7 offset:{64*s}")
            if (8*t + s) % 8 == 7:
                A("s_waitcnt lgkmcnt(0)")
    D = 64
    for s in range(8):
        for t in range(3):
            r = AF + 4 * (8*t + s)
            c = "0" if s == 0 else vr(D+4*t, 4)
            A(f"v_mfma_f32_16x16x32_bf16 {vr(D+4*t,4)}, {vr(r,4)}, {vr(32+4*s,4)}, {c}")
    A(f"""
    v_lshlrev_b32 v8, 4, v2               ; 16 j
    v_lshrrev_b32 v9, 1, v3
    v_lshlrev_b32 v9, 8, v9
    v_and_b32 v10, 1, v3
    v_lshl_add_u32 v9, v10, 3, v9
    v_add_u32 v9, v9, v8
    v_sub_u32 v9, s68, v9                 ; bX
    v_lshl_add_u32 v10, v3, 8, v8
    v_sub_u32 v10, s68, v10               ; bY
    v_mov_b32 v11, s68
    v_mov_b32 v12, 0
    s_nop 2
    """)
    for t in range(3):
        for r in range(4):
            if t == 2 and r == 3: continue
            A(f"v_cvt_pk_bf16_f32 v{D+4*t+r}, v{D+4*t+r}, v{D+4*t+r}")
    def sc(reg, base, c, deltas):
        for dl in deltas:
            A(f"ds_write_b16 v{base}, v{reg} offset:{4094 - 2*(c+dl)}")
    A("ds_write_b32 v11, v12 offset:4096")
    A("s_mov_b64 exec, 1")
    sc(D+10, 10, 2048, range(-4, 0))
    A("s_mov_b32 exec_lo, 0x55555555")
    A("s_mov_b32 exec_hi, 0x55555555")
    sc(D+8, 10, 1024, (-4, 4)); sc(D+9, 10, 1536, (-4, 4))
    A("s_mov_b64 exec, -1")
    sc(D+8, 10, 1024, range(-3, 4)); sc(D+9, 10, 1536, range(-3, 4))
    sc(D+6, 10, 512, range(-2, 3)); sc(D+7, 10, 516, range(-1, 2))
    sc(D+4, 9, 256, range(-1, 2)); sc(D+5, 9, 258, (0,))
    for r in range(4):
        sc(D+r, 9, r, (0,))
    A(f"""
    v_lshlrev_b32 v8, 4, v0
    v_add_u32 v9, s68, v8
    s_lshl_b32 s69, s{S_CHAN}, 13
    s_add_u32 s69, s69, {KP_OFF}
    s_add_u32 s70, s69, 4096
    s_waitcnt lgkmcnt(0)
    """)
    for it in range(4):
        b = 128 + 12 * it
        A(f"ds_read_b128 {vr(b,4)}, v9 offset:{1024*it}")
        A(f"ds_read_b32 v{b+4}, v9 offset:{1024*it+16}")
    A("s_waitcnt lgkmcnt(0)")
    for it in range(4):
        b = 128 + 12 * it
        for k in range(4):
            A(f"v_alignbit_b32 v{b+8+k}, v{b+k+1}, v{b+k}, 16")
        A(f"buffer_store_dwordx4 {vr(b,4)}, v8, {sr(SRD_WS,4)}, s69 offen offset:{1024*it}")
        A(f"buffer_store_dwordx4 {vr(b+8,4)}, v8, {sr(SRD_WS,4)}, s70 offen offset:{1024*it}")
    A("s_branch K1_KDONE")
    A.label("K1_WDJOB")
    A(f"""
    s_lshl_b32 s68, s{S_CH}, 10
    s_add_u32 s68, s68, {WDS}
    v_lshlrev_b32 v8, 4, v0
    v_add_u32 v9, s68, v8
    v_lshrrev_b32 v2, 5, v0
    v_bfe_u32 v3, v0, 2, 2
    v_lshl_add_u32 v3, v2, 2, v3
    v_lshlrev_b32 v3, 7, v3
    v_bfe_u32 v6, v0, 4, 1
    v_lshl_add_u32 v3, v6, 5, v3
    v_and_b32 v6, 3, v0
    v_lshl_add_u32 v3, v6, 3, v3
    v_add_u32 v3, s68, v3
    s_lshl_b32 s60, s59, 1
    s_mul_i32 s60, s60, {NU}
    s_add_u32 s60, s60, s58
    s_lshl_b32 s60, s60, 10
    s_add_u32 s60, s60, {WDF_OFF}          ; (2cp*86 + u)*1024
    s_add_u32 s61, s60, {NU*1024}
    s_waitcnt vmcnt(0)
    """)
    for job in range(2):
        if job == 1:
            A(f"s_cmp_ge_u32 s{S_CHAN}, {688-512}")
            A("s_cbranch_scc1 K1_KDONE")
            A(f"s_add_u32 s60, s60, {64*1024}")
            A(f"s_add_u32 s61, s61, {64*1024}")
        src = 240 + 8 * job
        o = 32 + 8 * job
        for half in range(2):
            A(f"ds_write_b128 v9, {vr(src+4*half,4)}")
            A("s_waitcnt lgkmcnt(0)")
            A(f"ds_read_b64_tr_b16 {vr(o+2*half,2)}, v3")
            A(f"ds_read_b64_tr_b16 {vr(o+4+2*half,2)}, v3 offset:64")
            A("s_waitcnt lgkmcnt(0)")
        A(f"buffer_store_dwordx4 {vr(o,4)}, v8, {sr(SRD_WS,4)}, s60 offen")
        A(f"buffer_store_dwordx4 {vr(o+4,4)}, v8, {sr(SRD_WS,4)}, s61 offen")
    A.label("K1_KDONE")
    A(f"""
    v_and_b32 v2, 15, v0
    v_bfe_u32 v3, v0, 4, 1                ; mg
    v_lshrrev_b32 v4, 5, v0               ; h
    v_lshrrev_b32 v5, 2, v2
    v_lshl_add_u32 v5, v4, 3, v5          ; 8h + (i>>2)
    v_mul_u32_u24 v8, 192, v5
    v_mul_u32_u24 v6, {UPOFF}, v3
    v_add_u32 v8, v8, v6
    v_and_b32 v6, 3, v2
    v_lshl_add_u32 v8, v6, 3, v8
    s_mul_i32 s68, s{S_NH}, 96
    v_add_u32 v8, s68, v8
    v_and_b32 v2, 31, v0                  ; n
    v_bfe_u32 v3, v2, 1, 3                ; swz
    v_xor_b32 v3, v3, v4                  ; h ^ swz
    s_lshl_b32 s68, s{S_CH}, 13
    s_add_u32 s68, s68, {XB}
    v_lshlrev_b32 v5, 7, v2
    v_add_u32 v5, s68, v5
    """)
    for s in range(4):
        A(f"v_xor_b32 v6, {2*s}, v3")
        A(f"v_lshl_add_u32 v{10+s}, v6, 4, v5")
    for i in range(1, 4):
        A(f"v_add_u32 v{16+i}, {i*WSLOT}, v8")
    A("v_mov_b32 v16, v8")
    ACC = lambda ui, nt: 128 + 16 * (2*ui + nt)
    WF = lambda b, ui: 32 + 12*b + 4*ui
    XF = lambda b, nt: 56 + 8*b + 4*nt
    A("s_waitcnt lgkmcnt(0)")
    A("s_barrier")
    def reads(kap):
        i, s = divmod(kap, 4); b = kap & 1
        for ui in range(3):
            for jj in range(2):
                A(f"ds_read_b64_tr_b16 {vr(WF(b,ui)+2*jj,2)}, v{16+(i&3)} offset:{s*3072 + jj*768 + 32*ui}")
        for nt in range(2):
            A(f"ds_read_b128 {vr(XF(b,nt),4)}, v{10+s} offset:{(i&1)*16384 + nt*4096}")
    A("s_barrier")
    reads(0)
    for kap in range(32):
        b = kap & 1
        if kap % 4 == 3:
            A("s_waitcnt lgkmcnt(0)")
            if kap < 31:
                A("s_barrier")
                reads(kap + 1)
        else:
            reads(kap + 1)
            A("s_waitcnt lgkmcnt(8)")
        for ui in range(3):
            for nt in range(2):
                c = "0" if kap == 0 else vr(ACC(ui,nt), 16)
                A(f"v_mfma_f32_32x32x16_bf16 {vr(ACC(ui,nt),16)}, {vr(WF(b,ui),4)}, {vr(XF(b,nt),4)}, {c}")
    A(f"""
    s_lshl_b32 s68, s{S_RB}, 2
    s_lshl_b32 s69, s{S_CH}, 1
    s_add_u32 s68, s68, s69
    s_mul_i32 s68, s68, {NU}
    s_mul_i32 s69, s{S_NH}, 3
    s_add_u32 s68, s68, s69
    s_add_u32 s68, s68, s{S_U0}
    s_lshl_b32 s68, s68, 10
    s_add_u32 s68, s68, {HF_OFF}
    s_add_u32 s69, s68, {NU*1024}
    v_lshlrev_b32 v8, 4, v0
    s_mov_b32 s70, 0xbfb8aa3b
    s_nop 7
    """)
    for ui in range(3):
        for nt in range(2):
            a = ACC(ui, nt)
            T = 32 + 24 * ((2*ui+nt) & 1)
            G, E, PU, O = T, T+8, T+16, T+20
            for k in range(4):
                A(f"v_cvt_pk_bf16_f32 v{O+k}, v{a+2*k}, v{a+2*k+1}")
                A(f"v_cvt_pk_bf16_f32 v{PU+k}, v{a+8+2*k}, v{a+8+2*k+1}")
            for k in range(4):
                A(f"v_lshlrev_b32 v{G+2*k}, 16, v{O+k}")
                A(f"v_and_b32 v{G+2*k+1}, 0xffff0000, v{O+k}")
            for k in range(8):
                A(f"v_mul_f32 v{E+k}, s70, v{G+k}")
            for k in range(8):
                A(f"v_exp_f32 v{E+k}, v{E+k}")
            for k in range(8):
                A(f"v_add_f32 v{E+k}, 1.0, v{E+k}")
            for k in range(8):
                A(f"v_rcp_f32 v{E+k}, v{E+k}")
            for k in range(8):
                A(f"v_mul_f32 v{G+k}, v{G+k}, v{E+k}")
            for k in range(4):
                A(f"v_cvt_pk_bf16_f32 v{O+k}, v{G+2*k}, v{G+2*k+1}")
            for k in range(4):
                A(f"v_lshlrev_b32 v{G+2*k}, 16, v{O+k}")
                A(f"v_and_b32 v{G+2*k+1}, 0xffff0000, v{O+k}")
                A(f"v_lshlrev_b32 v{E+2*k}, 16, v{PU+k}")
                A(f"v_and_b32 v{E+2*k+1}, 0xffff0000, v{PU+k}")
            for k in range(8):
                A(f"v_mul_f32 v{G+k}, v{G+k}, v{E+k}")
            for k in range(4):
                A(f"v_cvt_pk_bf16_f32 v{O+k}, v{G+2*k}, v{G+2*k+1}")
            A(f"buffer_store_dwordx4 {vr(O,4)}, v8, {sr(SRD_WS,4)}, s{68+nt} offen offset:{1024*ui}")
    A("s_waitcnt vmcnt(0)")

import struct
def fbits(x):
    return struct.unpack("<I", struct.pack("<f", float(x)))[0]
```

```python
from common import *

CSTR = 4160
CSZ = 8 * CSTR + 64
USTR = 96
UZ = 15
USZ = (64 + UZ) * USTR
CH_SZ = CSZ + USZ
CONV0 = 0
RED = 2 * CH_SZ
RROW = 272
RSZ = 64 * RROW
YS = RED + 4 * RSZ
YROW = 144
CNT = YS + 64 * YROW
K2_LDS = 163840

S_RB, S_CB, S_W = 48, 49, 53
SRD_WS, SRD_X, SRD_OUT = 64, 56, 60

def gen_k2(A):
    kernel_begin(A, "k2_kernel")
    A("s_cmp_ge_u32 s2, 256")
    A("s_cbranch_scc1 K2_END")
    A("s_load_dwordx16 s[16:31], s[0:1], 0")
    A("s_load_dwordx16 s[32:47], s[0:1], 64")
    A("v_lshrrev_b32 v1, 6, v0")
    A("v_and_b32 v0, 63, v0")
    A(f"v_readfirstlane_b32 s{S_W}, v1")
    A(f"""
    s_and_b32 s54, s2, 7
    s_lshr_b32 s55, s2, 3
    s_lshl_b32 s{S_RB}, s54, 2
    s_and_b32 s68, s55, 3
    s_add_u32 s{S_RB}, s{S_RB}, s68
    s_lshr_b32 s{S_CB}, s55, 2
    s_waitcnt lgkmcnt(0)
    """)
    srd(A, SRD_WS, P_WS, WS_BYTES)
    A(f"s_cmp_ge_u32 s{S_W}, 4")
    A("s_cbranch_scc1 K2_GEMM")
    gen_conv(A)
    A.label("K2_GEMM")
    gen_gemm2(A)
    A.label("K2_END")
    A("s_endpgm")

def gen_conv(A):
    S_CH, S_HQ, S_CHAN, S_BASE = 54, 55, 56, 57
    A(f"""
    s_lshr_b32 s{S_CH}, s{S_W}, 1
    s_and_b32 s{S_HQ}, s{S_W}, 1
    s_lshl_b32 s{S_CHAN}, s{S_CB}, 6
    s_lshl_b32 s68, s{S_RB}, 1
    s_add_u32 s{S_CHAN}, s{S_CHAN}, s68
    s_add_u32 s{S_CHAN}, s{S_CHAN}, s{S_CH}
    s_mul_i32 s{S_BASE}, s{S_CH}, {CH_SZ}
    s_lshl_b32 s68, s{S_CHAN}, 13
    s_lshl_b32 s69, s{S_HQ}, 12
    s_add_u32 s68, s68, s69
    s_add_u32 s68, s68, {KP_OFF}
    s_lshl_b32 s69, s{S_CHAN}, 12
    s_lshl_b32 s70, s{S_HQ}, 11
    s_add_u32 s69, s69, s70
    s_add_u32 s69, s69, {XT_OFF}
    v_lshlrev_b32 v2, 4, v0
    """)
    for it in range(4):
        A(f"buffer_load_dwordx4 {vr(32+4*it,4)}, v2, {sr(SRD_WS,4)}, s68 offen offset:{1024*it}")
    for it in range(2):
        A(f"buffer_load_dwordx4 {vr(48+4*it,4)}, v2, {sr(SRD_WS,4)}, s69 offen offset:{1024*it}")
    A(f"""
    s_lshl_b32 s70, s{S_CHAN}, 1
    v_mov_b32 v3, s70
    global_load_ushort v56, v3, {sr(P_DSK,2)}
    """)
    A(f"""
    v_mov_b32 v8, 0
    v_mov_b32 v9, 0
    v_mov_b32 v10, 0
    v_mov_b32 v11, 0
    s_sub_u32 s70, 1, s{S_HQ}
    s_mul_i32 s70, s70, {CSTR}
    s_add_u32 s70, s70, s{S_BASE}
    v_lshrrev_b32 v4, 2, v0
    v_and_b32 v5, 3, v0
    v_mul_u32_u24 v4, {2*CSTR}, v4
    v_lshl_add_u32 v4, v5, 4, v4
    v_add_u32 v4, s70, v4
    s_mov_b64 exec, 0xffff
    ds_write_b128 v4, v[8:11] offset:4096
    s_mov_b64 exec, -1
    s_mul_i32 s71, s{S_HQ}, 720
    s_add_u32 s71, s71, s{S_BASE}
    v_add_u32 v4, s71, v2
    s_mov_b32 exec_lo, -1
    s_mov_b32 exec_hi, 0x1fff              ; 45 lanes * 16B = 720B
    ds_write_b128 v4, v[8:11] offset:{CSZ}
    s_mov_b64 exec, -1
    v_mov_b32 v4, {CNT}
    ds_write_b32 v4, v8
    v_add_u32 v4, s70, v2
    v_lshrrev_b32 v5, 2, v0
    v_mul_u32_u24 v5, {USTR}, v5
    v_and_b32 v6, 3, v0
    v_lshl_add_u32 v5, v6, 4, v5
    s_mul_i32 s71, s{S_HQ}, {32*USTR}
    s_add_u32 s71, s71, s{S_BASE}
    s_add_u32 s71, s71, {CSZ + UZ*USTR}
    v_add_u32 v5, s71, v5
    s_waitcnt lgkmcnt(0)
    """)
    for it in range(4):
        A(f"s_waitcnt vmcnt({6-it})")
        d = 32 + 4*it
        o = 1024 * it
        for j in range(4):
            A(f"ds_write_b32 v4, v{d+j} offset:{o + 4 + 4*j}")
        for j in range(2):
            A(f"ds_write_b64 v4, {vr(d+2*j,2)} offset:{2*CSTR + o + 8 + 8*j}")
        for j in range(4):
            A(f"ds_write_b32 v4, v{d+j} offset:{4*CSTR + o + 12 + 4*j}")
        A(f"ds_write_b128 v4, {vr(d,4)} offset:{6*CSTR + o + 16}")
    for it in range(2):
        A(f"s_waitcnt vmcnt({2-it})")
        A(f"ds_write_b128 v5, {vr(48+4*it,4)} offset:{16*USTR*it}")
    A(f"""
    v_and_b32 v6, 15, v0
    v_lshrrev_b32 v7, 4, v0
    v_and_b32 v8, 7, v6
    v_mul_u32_u24 v8, {CSTR}, v8
    v_lshrrev_b32 v9, 3, v6
    v_sub_u32 v9, v7, v9
    v_lshl_add_u32 v8, v9, 4, v8
    s_lshl_b32 s70, s{S_HQ}, 5
    s_sub_u32 s70, s{S_BASE}, s70
    s_add_u32 s70, s70, {4096 - 64*63}
    v_add_u32 v8, s70, v8
    v_mul_u32_u24 v9, {USTR}, v6
    v_lshl_add_u32 v9, v7, 4, v9
    s_add_u32 s70, s{S_BASE}, {CSZ}
    v_add_u32 v9, s70, v9
    s_waitcnt vmcnt(0) lgkmcnt(0)
    s_barrier
    """)
    ACC = lambda p: 16 + 4*p
    AFR = lambda b, a: 64 + 32*b + 4*a
    BFR = lambda b, e: 64 + 32*b + 16 + 4*e
    def reads(rho):
        b = rho & 1
        for a in range(4):
            A(f"ds_read_b128 {vr(AFR(b,a),4)}, v8 offset:{64*(63-(rho+16*a))}")
            A(f"ds_read_b128 {vr(BFR(b,a),4)}, v9 offset:{USTR*(16*a - rho + 15)}")
    reads(0)
    for rho in range(16):
        b = rho & 1
        if rho < 15:
            reads(rho + 1)
            A("s_waitcnt lgkmcnt(8)")
        else:
            A("s_waitcnt lgkmcnt(0)")
        first = set()
        for a in range(4):
            for e in range(4 - a):
                p = a + e
                c = "0" if (rho == 0 and a == 0) else vr(ACC(p), 4)
                A(f"v_mfma_f32_16x16x32_bf16 {vr(ACC(p),4)}, {vr(AFR(b,a),4)}, {vr(BFR(b,e),4)}, {c}")
    A(f"""
    v_mul_u32_u24 v10, {USTR}, v6
    v_lshl_add_u32 v10, v7, 3, v10
    s_lshl_b32 s70, s{S_HQ}, 5
    s_add_u32 s70, s70, s{S_BASE}
    s_add_u32 s70, s70, {CSZ + UZ*USTR}
    v_add_u32 v10, s70, v10
    """)
    for p in range(4):
        A(f"ds_read_b64 {vr(32+2*p,2)}, v10 offset:{16*USTR*p}")
    A("v_lshlrev_b32 v56, 16, v56")
    A(f"""
    v_and_b32 v11, 1, v7
    v_lshlrev_b32 v11, 10, v11
    v_lshl_add_u32 v11, v6, 6, v11
    v_lshrrev_b32 v12, 1, v7
    v_lshl_add_u32 v11, v12, 4, v11
    s_lshl_b32 s70, s{S_CHAN}, 12
    s_lshl_b32 s71, s{S_HQ}, 5
    s_add_u32 s70, s70, s71
    s_add_u32 s70, s70, {YA_OFF}
    s_waitcnt lgkmcnt(0)
    """)
    T = 64
    for p in range(4):
        a = ACC(p)
        t = T + 16*p
        A(f"v_cvt_pk_bf16_f32 v{t+8}, v{a}, v{a+1}")
        A(f"v_cvt_pk_bf16_f32 v{t+9}, v{a+2}, v{a+3}")
        for k in range(2):
            A(f"v_lshlrev_b32 v{t+2*k}, 16, v{32+2*p+k}")
            A(f"v_and_b32 v{t+2*k+1}, 0xffff0000, v{32+2*p+k}")
        for k in range(4):
            A(f"v_mul_f32 v{t+k}, v{t+k}, v56")
        for k in range(2):
            A(f"v_cvt_pk_bf16_f32 v{t+10+k}, v{t+2*k}, v{t+2*k+1}")
        for k in range(2):
            A(f"v_lshlrev_b32 v{t+2*k}, 16, v{t+10+k}")
            A(f"v_and_b32 v{t+2*k+1}, 0xffff0000, v{t+10+k}")
            A(f"v_lshlrev_b32 v{t+4+2*k}, 16, v{t+8+k}")
            A(f"v_and_b32 v{t+4+2*k+1}, 0xffff0000, v{t+8+k}")
        for k in range(4):
            A(f"v_add_f32 v{t+k}, v{t+k}, v{t+4+k}")
        o = 40 + 4*(p >> 1) + 2*(p & 1)
        for k in range(2):
            A(f"v_cvt_pk_bf16_f32 v{o+k}, v{t+2*k}, v{t+2*k+1}")
    A("s_nop 1")
    for pp in range(2):
        o = 40 + 4*pp
        A(f"v_permlane16_swap_b32 v{o}, v{o+2}")
        A(f"v_permlane16_swap_b32 v{o+1}, v{o+3}")
    for pp in range(2):
        o = 40 + 4*pp
        A(f"buffer_store_dwordx4 {vr(o,4)}, v11, {sr(SRD_WS,4)}, s70 offen offset:{2048*pp} sc1")
    A(f"""
    s_waitcnt vmcnt(0)
    v_mov_b32 v4, {CNT}
    v_mov_b32 v5, 1
    s_mov_b64 exec, 1
    ds_add_rtn_u32 v6, v4, v5
    s_waitcnt lgkmcnt(0)
    v_readfirstlane_b32 s70, v6
    s_lshl_b32 s71, s{S_CB}, 7
    s_lshl_b32 s72, s{S_RB}, 2
    s_add_u32 s71, s71, s72
    s_add_u32 s71, s71, {FLAG_OFF}
    v_mov_b32 v4, 0
    s_cmp_eq_u32 s70, 3
    s_cbranch_scc0 K2_CONV_END
    buffer_store_dword v5, v4, {sr(SRD_WS,4)}, s71 offen sc1
    s_waitcnt vmcnt(0)
    """)
    A.label("K2_CONV_END")
    A("s_endpgm")

def gen_gemm2(A):
    S_WP = 54
    NB = 11
    srd(A, SRD_X, P_X, 2048*512*2)
    srd(A, SRD_OUT, P_OUT, 2048*512*2)
    A(f"""
    s_sub_u32 s{S_WP}, s{S_W}, 4
    s_mul_i32 s68, s{S_WP}, 22
    s_cmp_eq_u32 s{S_WP}, 3
    s_cselect_b32 s68, 65, s68
    s_lshl_b32 s69, s{S_RB}, 1
    s_mul_i32 s69, s69, {NU}
    s_add_u32 s69, s69, s68
    s_lshl_b32 s72, s69, 10
    s_add_u32 s73, s72, {NU*1024}         ; H rt1
    s_lshl_b32 s69, s{S_CB}, 1
    s_mul_i32 s69, s69, {NU}
    s_add_u32 s69, s69, s68
    s_lshl_b32 s74, s69, 10
    s_add_u32 s74, s74, {WDF_OFF}
    s_add_u32 s75, s74, {NU*1024}
    v_lshlrev_b32 v2, 4, v0
    """)
    BUF = lambda s: 80 + 16 * (s % NB)
    ACC = lambda ct, rt: 16 + 16 * (2*ct + rt)
    def loads(s):
        if s and s % 4 == 0:
            for k in range(4):
                A(f"s_add_u32 s{72+k}, s{72+k}, 4096")
        for k in range(4):
            A(f"buffer_load_dwordx4 {vr(BUF(s)+4*k,4)}, v2, {sr(SRD_WS,4)}, s{72+k} offen offset:{1024*(s%4)}")
    for s in range(NB):
        loads(s)
    A("s_barrier")
    for s in range(22):
        rem = min(21 - s, NB - 1)
        A(f"s_waitcnt vmcnt({4*rem})")
        if s == 21:
            A(f"s_cmp_ge_u32 s{S_WP}, 2")
            A("s_cbranch_scc1 K2_SKIP21")
        b = BUF(s)
        for ct in range(2):
            for rt in range(2):
                c = "0" if s == 0 else vr(ACC(ct,rt), 16)
                A(f"v_mfma_f32_32x32x16_bf16 {vr(ACC(ct,rt),16)}, {vr(b+8+4*ct,4)}, {vr(b+4*rt,4)}, {c}")
        if s + NB < 22:
            loads(s + NB)
    A.label("K2_SKIP21")
    A(f"""
    v_and_b32 v3, 15, v0
    v_lshrrev_b32 v4, 4, v0
    v_lshlrev_b32 v5, 10, v3
    v_lshl_add_u32 v5, v4, 4, v5
    s_lshl_b32 s68, s{S_RB}, 16
    s_lshl_b32 s69, s{S_WP}, 14
    s_add_u32 s68, s68, s69
    s_lshl_b32 s69, s{S_CB}, 7
    s_add_u32 s76, s68, s69
    buffer_load_dwordx4 v[80:83], v5, {sr(SRD_X,4)}, s76 offen
    buffer_load_dwordx4 v[84:87], v5, {sr(SRD_X,4)}, s76 offen offset:64
    v_and_b32 v6, 31, v0
    v_lshrrev_b32 v7, 5, v0
    v_mul_u32_u24 v8, {RROW}, v6
    v_lshl_add_u32 v8, v7, 4, v8
    s_mul_i32 s68, s{S_WP}, {RSZ}
    s_add_u32 s68, s68, {RED}
    v_add_u32 v8, s68, v8
    s_nop 4
    """)
    for ct in range(2):
        for rt in range(2):
            for a in range(4):
                A(f"ds_write_b128 v8, {vr(ACC(ct,rt)+4*a,4)} offset:{rt*32*RROW + ct*128 + a*32}")
    A(f"""
    s_cmp_lg_u32 s{S_WP}, 0
    s_cbranch_scc1 K2_POLLED
    s_lshl_b32 s70, s{S_CB}, 7
    s_add_u32 s70, s70, {FLAG_OFF}
    v_lshlrev_b32 v9, 2, v6
    s_mov_b32 s71, 0
    """)
    A.label("K2_POLL")
    A(f"""
    buffer_load_dword v10, v9, {sr(SRD_WS,4)}, s70 offen sc1
    s_add_u32 s71, s71, 1
    s_waitcnt vmcnt(0)
    v_cmp_ne_u32 vcc, 1, v10
    s_cmp_ge_u32 s71, 0x10000
    s_cbranch_scc1 K2_POLLED
    s_cbranch_vccz K2_POLLED
    s_sleep 2
    s_branch K2_POLL
    """)
    A.label("K2_POLLED")
    A("s_waitcnt lgkmcnt(0)")
    A("s_barrier")
    A(f"""
    v_lshrrev_b32 v9, 2, v0
    v_and_b32 v10, 3, v0
    v_lshlrev_b32 v11, 12, v9
    v_lshl_add_u32 v11, v10, 5, v11
    s_lshl_b32 s68, s{S_CB}, 18
    s_lshl_b32 s69, s{S_WP}, 16
    s_add_u32 s68, s68, s69
    s_lshl_b32 s69, s{S_RB}, 7
    s_add_u32 s68, s68, s69
    s_add_u32 s68, s68, {YA_OFF}
    buffer_load_dwordx4 v[88:91], v11, {sr(SRD_WS,4)}, s68 offen sc1
    buffer_load_dwordx4 v[92:95], v11, {sr(SRD_WS,4)}, s68 offen offset:16 sc1
    v_mul_u32_u24 v12, {YROW}, v9
    v_lshl_add_u32 v12, v10, 5, v12
    s_mul_i32 s68, s{S_WP}, {16*YROW}
    s_add_u32 s68, s68, {YS}
    v_add_u32 v12, s68, v12
    v_mul_u32_u24 v13, {RROW}, v3
    v_lshl_add_u32 v13, v4, 5, v13
    s_mul_i32 s68, s{S_WP}, {16*RROW}
    s_add_u32 s68, s68, {RED}
    v_add_u32 v13, s68, v13
    """)
    for it in range(2):
        for q in range(4):
            for hh in range(2):
                A(f"ds_read_b128 {vr(96 + 32*it + 8*q + 4*hh,4)}, v13 offset:{q*RSZ + it*128 + 16*hh}")
        A("s_waitcnt lgkmcnt(0)")
    for it in range(2):
        b = 96 + 32*it
        for k in range(8):
            A(f"v_add_f32 v{b+k}, v{b+k}, v{b+8+k}")
            A(f"v_add_f32 v{b+16+k}, v{b+16+k}, v{b+24+k}")
        for k in range(8):
            A(f"v_add_f32 v{b+k}, v{b+k}, v{b+16+k}")
        for k in range(4):
            A(f"v_cvt_pk_bf16_f32 v{b+8+k}, v{b+2*k}, v{b+2*k+1}")
    A(f"""
    s_waitcnt vmcnt(0)
    ds_write_b128 v12, v[88:91]
    ds_write_b128 v12, v[92:95] offset:16
    v_lshrrev_b32 v14, 2, v3
    v_lshl_add_u32 v14, v4, 3, v14
    v_mul_u32_u24 v14, {YROW}, v14
    v_and_b32 v15, 3, v3
    v_lshl_add_u32 v14, v15, 3, v14
    s_lshl_b32 s68, s{S_WP}, 5
    s_add_u32 s68, s68, {YS}
    v_add_u32 v14, s68, v14
    s_waitcnt lgkmcnt(0)
    s_barrier
    """)
    for it in range(2):
        for jj in range(2):
            A(f"ds_read_b64_tr_b16 {vr(88+4*it+2*jj,2)}, v14 offset:{(32*it + 4*jj)*YROW}")
    A("s_waitcnt lgkmcnt(0)")
    for it in range(2):
        b = 96 + 32*it
        X = 80 + 4*it; Y = 88 + 4*it
        T = 160 + 24*it
        for k in range(4):
            A(f"v_lshlrev_b32 v{T+2*k}, 16, v{X+k}")
            A(f"v_and_b32 v{T+2*k+1}, 0xffff0000, v{X+k}")
            A(f"v_lshlrev_b32 v{T+8+2*k}, 16, v{Y+k}")
            A(f"v_and_b32 v{T+8+2*k+1}, 0xffff0000, v{Y+k}")
        for k in range(8):
            A(f"v_add_f32 v{T+k}, v{T+k}, v{T+8+k}")
        for k in range(4):
            A(f"v_cvt_pk_bf16_f32 v{T+16+k}, v{T+2*k}, v{T+2*k+1}")
        for k in range(4):
            A(f"v_lshlrev_b32 v{T+2*k}, 16, v{T+16+k}")
            A(f"v_and_b32 v{T+2*k+1}, 0xffff0000, v{T+16+k}")
            A(f"v_lshlrev_b32 v{T+8+2*k}, 16, v{b+8+k}")
            A(f"v_and_b32 v{T+8+2*k+1}, 0xffff0000, v{b+8+k}")
        for k in range(8):
            A(f"v_add_f32 v{T+k}, v{T+k}, v{T+8+k}")
        for k in range(4):
            A(f"v_cvt_pk_bf16_f32 v{T+16+k}, v{T+2*k}, v{T+2*k+1}")
        A(f"buffer_store_dwordx4 {vr(T+16,4)}, v5, {sr(SRD_OUT,4)}, s76 offen offset:{64*it}")
    A("s_waitcnt vmcnt(0)")
```

```python
import sys
from common import *
import k1, k2
hdr = open("parallel_sum__ssm_conv_s4__swiglu_ffn__prompt.s.ref").read().split("; Override launch")[0]
A = Asm()
A.raw(hdr.rstrip("\n"))
A.raw(f"; @launch kernel=k1_kernel grid=(256,1,1) block=(512,1,1) lds={k1.K1_LDS}")
A.raw(f"; @launch kernel=k2_kernel grid=(256,1,1) block=(512,1,1) lds={k2.K2_LDS}")
A.raw('.amdgcn_target "amdgcn-amd-amdhsa--gfx950"')
A.raw(".text")
k1.gen_k1(A)
k2.gen_k2(A)
A.raw('.section .rodata,"a"')
kernel_desc(A, "k1_kernel", 256, 96, 256)
kernel_desc(A, "k2_kernel", 256, 96, 256)
out = sys.argv[1] if len(sys.argv) > 1 else "parallel_sum__ssm_conv_s4__swiglu_ffn__prompt.s"
open(out, "w").write(A.text())
print("wrote", out, len(A.lines), "lines")
```
